```python
import torch

def _softmax(x, axis=-1):
    return torch.softmax(x, dim=axis)
def _gelu(x):
    return torch.nn.functional.gelu(x, approximate="tanh")
def _silu(x):
    return torch.nn.functional.silu(x)
def _sigmoid(x):
    return torch.sigmoid(x)
def _layernorm(x, axis=-1, eps=1e-5):
    m = x.mean(dim=axis, keepdim=True)
    v = x.var(dim=axis, keepdim=True, unbiased=False)
    return (x - m) / torch.sqrt(v + eps)
def _scatter_add(tgt, idx, src, axis=0):
    return tgt.clone().index_add_(axis, idx, src)
def _segment_sum(src, seg, n):
    out = torch.zeros((n,) + src.shape[1:], dtype=src.dtype)
    return out.index_add_(0, seg, src)
def _pad(x, pw):
    flat = tuple(v for pair in reversed(pw) for v in pair)
    return torch.nn.functional.pad(x, flat)

kernel_name = 'gather_scatter__kernel_systems_refs_featgraph__graph'

def setup_inputs():

    _w = (lambda a: (lambda t: t.to(torch.bfloat16) if t.is_floating_point() else t)(torch.as_tensor(a)))
    N, deg, D = 10000, 32, 128
    E = N * deg
    scale = D ** -0.5
    src = (lambda lo, hi, *s: torch.randint(lo, hi, s))(0, N, E).to(torch.int64)
    dst = (lambda lo, hi, *s: torch.randint(lo, hi, s))(0, N, E).to(torch.int64)
    return {
        "x": _w((lambda *s: torch.randn(*s, dtype=torch.bfloat16) * 0.8)(N, D)),
        "src": _w(src),
        "dst": _w(dst),
        "w_q": _w((lambda *s: torch.randn(*s, dtype=torch.bfloat16) * 0.8)(D, D) * scale),
        "w_v": _w((lambda *s: torch.randn(*s, dtype=torch.bfloat16) * 0.05)(D, D) * scale),
    }

def reference(x, src, dst, w_q, w_v):
    N, D = x.shape
    xs = x[src]
    xd = x[dst]
    q = xd @ w_q
    logits = torch.einsum('ed,ed->e', xs, q) * (float(D) ** -0.5)
    alpha = _sigmoid(logits)
    msg = alpha[:, None] * (xs @ w_v)
    return _segment_sum(msg, dst, N)
```

```python
class Asm:
    def __init__(self):
        self.lines = []
        self._lab = 0
    def __call__(self, s):
        for l in s.strip("\n").split("\n"):
            self.lines.append("    " + l.strip())
    def raw(self, s):
        self.lines.append(s)
    def label(self, name):
        self.lines.append(name + ":")
    def newlabel(self, base="L"):
        self._lab += 1
        return f"{base}_{self._lab}"
    def text(self):
        return "\n".join(self.lines) + "\n"

def vr(b, n):
    return f"v[{b}:{b+n-1}]" if n > 1 else f"v{b}"
def sr(b, n):
    return f"s[{b}:{b+n-1}]" if n > 1 else f"s{b}"

HDR_COMMENT = """; Kernarg layout for this problem (64 bytes, ptrs only, base s[0:1]):
"""

def kernel_file(kernels, single=False):
    out = HDR_COMMENT
    for k in kernels:
        g = k["grid"]; b = k["block"]
        if single:
            out += f"; @launch grid=({g[0]},{g[1]},{g[2]}) block=({b[0]},{b[1]},{b[2]}) lds={k['lds']}\n"
        else:
            out += f"; @launch kernel={k['name']} grid=({g[0]},{g[1]},{g[2]}) block=({b[0]},{b[1]},{b[2]}) lds={k['lds']}\n"
    out += '.amdgcn_target "amdgcn-amd-amdhsa--gfx950"\n.text\n'
    seen = set()
    for k in kernels:
        if k["name"] in seen: continue
        seen.add(k["name"])
        n = k["name"]
        out += f".globl {n}\n.p2align 8\n.type {n},@function\n{n}:\n"
        out += k["body"]
        if not k["body"].rstrip().endswith("s_endpgm"):
            out += "    s_endpgm\n"
    out += '.section .rodata,"a"\n'
    seen = set()
    for k in kernels:
        if k["name"] in seen: continue
        seen.add(k["name"])
        n = k["name"]
        vg = k["vgpr"]
        acc = k.get("accum", (vg + 3) // 4 * 4)
        out += f""".p2align 6
.amdhsa_kernel {n}
  .amdhsa_next_free_vgpr {vg}
  .amdhsa_next_free_sgpr {k['sgpr']}
  .amdhsa_accum_offset {acc}
  .amdhsa_group_segment_fixed_size 0
  .amdhsa_kernarg_size 64
  .amdhsa_user_sgpr_count 2
  .amdhsa_user_sgpr_kernarg_segment_ptr 1
  .amdhsa_system_sgpr_workgroup_id_x 1
"""
        if k.get("denorm"):
            out += "  .amdhsa_float_denorm_mode_32 3\n"
        out += ".end_amdhsa_kernel\n"
    return out
```

```python
import sys, struct, math
from asmlib import *

NAME = "gather_scatter__kernel_systems_refs_featgraph__graph_kernel"
NWG = 250
NPB = 40
CAPN = 64
NL   = 0
CNT  = NL + NPB * CAPN * 4
QT   = CNT + 256
RS   = 272
XO   = QT + NPB * RS
WS_  = 288
WQ   = XO + 48 * RS
WV   = WQ + 128 * WS_
LDS_END = WV + 128 * WS_
PART = XO
PSTRIDE = 48 * RS
NSPLIT = 3
INVALID = 0x40000000

def f32bits(x):
    return struct.unpack("<I", struct.pack("<f", x))[0]
NEGC = f32bits(-(128.0 ** -0.5) * math.log2(math.e))

sX, sSRC, sDST, sWQ, sWV, sOUT, sWSP, sDBG = 20, 24, 28, 32, 36, 40, 44, 48
sW, sB, sS, sN, sI, sNEG = 52, 53, 54, 55, 56, 57
sMB0 = 58
vLane, vRho16, vNL, vCnt, vM0, vM1 = 1, 2, 3, 4, 5, 6
vE, vADR, vP = 12, 16, 20
vY0, vY1, vZ0, vZ1 = 24, 25, 26, 27
vAE, vAO = 28, 30
vQ, vACC, vXA, vXB = 32, 40, 56, 88

def srd(a, s, lo, nbytes):
    a(f"s_mov_b32 s{s}, s{lo}\ns_mov_b32 s{s+1}, s{lo+1}\ns_mov_b32 s{s+2}, {nbytes}\ns_mov_b32 s{s+3}, 0x20000")

def gemm_frags_A(a, wbase, vT, dst):
    for h in range(2):
        for c in range(4):
            r = dst + (h * 4 + c) * 4
            off = c * 32 * WS_ + h * 8
            a(f"ds_read_b64_tr_b16 {vr(r,2)}, v{vT} offset:{off}")
            a(f"ds_read_b64_tr_b16 {vr(r+2,2)}, v{vT} offset:{off + 4*WS_}")

def compute_tile(a, X):
    order = [0, 2, 1, 3]
    for u in range(8):
        for j in (order if u == 7 else range(4)):
            if u == 0:
                a(f"v_dot2_f32_bf16 v{vP+j}, v{X+8*j+u}, v{vQ+u}, 0")
            else:
                a(f"v_dot2c_f32_bf16 v{vP+j}, v{X+8*j+u}, v{vQ+u}")
    dp = "row_mask:0xf bank_mask"
    a(f"""
    v_add_f32_dpp v{vY0}, v{vP+0}, v{vP+0} row_half_mirror {dp}:0x5
    v_add_f32_dpp v{vY0}, v{vP+2}, v{vP+2} row_half_mirror {dp}:0xa
    v_add_f32_dpp v{vY1}, v{vP+1}, v{vP+1} row_half_mirror {dp}:0x5
    v_add_f32_dpp v{vY1}, v{vP+3}, v{vP+3} row_half_mirror {dp}:0xa
    v_add_f32_dpp v{vZ0}, v{vY0}, v{vY0} quad_perm:[1,0,3,2] {dp}:0xf
    s_nop 0
    v_add_f32_dpp v{vZ1}, v{vY1}, v{vY1} quad_perm:[1,0,3,2] {dp}:0xf
    v_cndmask_b32 v{vZ0}, v{vZ0}, v{vZ1}, s[{sMB0}:{sMB0+1}]
    s_nop 1
    v_add_f32_dpp v{vZ1}, v{vZ0}, v{vZ0} quad_perm:[2,3,0,1] {dp}:0xf
    v_mul_f32 v{vZ1}, s{sNEG}, v{vZ1}
    v_exp_f32 v{vZ1}, v{vZ1}
    s_nop 0
    v_add_f32 v{vZ1}, 1.0, v{vZ1}
    v_rcp_f32 v{vZ1}, v{vZ1}
    s_nop 0
    v_cvt_pk_bf16_f32 v{vZ0}, v{vZ1}, v{vZ1}
    s_nop 1
    v_and_b32_dpp v{vAE}, v{vZ0}, v{vM0} quad_perm:[0,0,0,0] {dp}:0xf
    v_and_b32_dpp v{vAE+1}, v{vZ0}, v{vM1} quad_perm:[0,0,0,0] {dp}:0xf
    v_and_b32_dpp v{vAO}, v{vZ0}, v{vM0} quad_perm:[1,1,1,1] {dp}:0xf
    v_and_b32_dpp v{vAO+1}, v{vZ0}, v{vM1} quad_perm:[1,1,1,1] {dp}:0xf
    """)
    for j in [0, 2, 1, 3]:
        A = vAO if (j & 1) else vAE
        for hq in range(4):
            acc = vACC + 4 * hq
            a(f"v_mfma_f32_4x4x4_16b_bf16 {vr(acc,4)}, {vr(A,2)}, {vr(X+8*j+2*hq,2)}, {vr(acc,4)} cbsz:1 abid:{j>>1}")

def issue_tile(a, X):
    a("s_waitcnt lgkmcnt(0)")
    for j in range(4):
        a(f"v_add_u32 v{vADR+j}, v{vE+j}, v{vRho16}")
    a(f"ds_read_b128 {vr(vE,4)}, v{vNL}")
    a(f"v_add_u32 v{vNL}, {NSPLIT*16}, v{vNL}")
    for j in range(4):
        a(f"buffer_load_dwordx4 {vr(X+8*j,4)}, v{vADR+j}, s[{sX}:{sX+3}], 0 offen")
        a(f"buffer_load_dwordx4 {vr(X+8*j+4,4)}, v{vADR+j}, s[{sX}:{sX+3}], 0 offen offset:128")

def gen():
    a = Asm()
    a(f"""
    s_cmp_ge_u32 s2, {NWG}
    s_cbranch_scc1 L_end
    s_load_dwordx16 s[4:19], s[0:1], 0
    v_and_b32 v{vLane}, 63, v0
    v_lshrrev_b32 v7, 6, v0
    s_nop 0
    v_readfirstlane_b32 s{sW}, v7
    v_mov_b32 v8, {INVALID:#x}
    v_mov_b32 v9, v8
    v_mov_b32 v10, v8
    v_mov_b32 v11, v8
    v_lshlrev_b32 v7, 4, v0
    v_cmp_gt_u32 vcc, 640, v0
    s_and_saveexec_b64 s[60:61], vcc
    ds_write_b128 v7, v[8:11] offset:{NL}
    s_mov_b64 exec, s[60:61]
    v_mov_b32 v8, 0
    v_lshlrev_b32 v7, 2, v0
    v_cmp_gt_u32 vcc, 64, v0
    s_and_saveexec_b64 s[60:61], vcc
    ds_write_b32 v7, v8 offset:{CNT}
    s_mov_b64 exec, s[60:61]
    s_waitcnt lgkmcnt(0)
    """)
    srd(a, sX, 4, 2560000); srd(a, sSRC, 6, 1280000); srd(a, sDST, 8, 1280000)
    srd(a, sWQ, 10, 32768); srd(a, sWV, 12, 32768); srd(a, sOUT, 14, 2560000)
    srd(a, sWSP, 18, 0x1000000); srd(a, sDBG, 16, 256)
    a(f"""
    s_mov_b32 s{sNEG}, {NEGC:#x}
    s_mov_b32 s{sMB0}, 0xaaaaaaaa
    s_mov_b32 s{sMB0+1}, 0xaaaaaaaa
    v_lshlrev_b32 v7, 4, v0                       ; t*16
    buffer_load_dwordx4 v[56:59], v7, s[{sWQ}:{sWQ+3}], 0 offen
    v_add_u32 v8, 16384, v7
    buffer_load_dwordx4 v[60:63], v8, s[{sWQ}:{sWQ+3}], 0 offen
    buffer_load_dwordx4 v[64:67], v7, s[{sWV}:{sWV+3}], 0 offen
    buffer_load_dwordx4 v[68:71], v8, s[{sWV}:{sWV+3}], 0 offen
    s_mul_i32 s62, s2, {NPB*256}
    v_cmp_gt_u32 vcc, 640, v0
    s_and_saveexec_b64 s[60:61], vcc
    s_cbranch_execz L_noxo
    buffer_load_dwordx4 v[72:75], v7, s[{sX}:{sX+3}], s62 offen
L_noxo:
    s_mov_b64 exec, s[60:61]
    v_lshrrev_b32 v8, 4, v0                       ; row = t>>4
    v_and_b32 v9, 15, v0
    v_lshlrev_b32 v9, 4, v9                       ; colbyte
    v_mul_u32_u24 v10, {WS_}, v8
    v_add_u32 v10, v10, v9
    v_mul_u32_u24 v11, {RS}, v8
    v_add_u32 v11, v11, v9
    s_waitcnt vmcnt(0)
    ds_write_b128 v10, v[56:59] offset:{WQ}
    ds_write_b128 v10, v[60:63] offset:{WQ + 64*WS_}
    v_add_u32 v10, {WV}, v10
    ds_write_b128 v10, v[64:67]
    ds_write_b128 v10, v[68:71] offset:{64*WS_}
    v_cmp_gt_u32 vcc, 640, v0
    s_and_saveexec_b64 s[60:61], vcc
    ds_write_b128 v11, v[72:75] offset:{XO}
    s_mov_b64 exec, s[60:61]
    s_waitcnt lgkmcnt(0)
    s_barrier
    """)
    a(f"""
    s_cmp_ge_u32 s{sW}, 12
    s_cbranch_scc1 L_qdone
    s_and_b32 s62, s{sW}, 3                       ; cbp
    s_lshr_b32 s63, s{sW}, 2                      ; nt
    v_and_b32 v7, 15, v{vLane}                    ; i / n
    v_lshrrev_b32 v8, 4, v{vLane}                 ; g
    v_lshrrev_b32 v9, 2, v7                       ; i>>2
    v_lshl_add_u32 v9, v8, 3, v9                  ; 8g + (i>>2)
    v_mul_u32_u24 v9, {WS_}, v9
    v_and_b32 v10, 3, v7
    v_lshlrev_b32 v10, 4, v10                     ; 8*(i&3)*2 bytes
    v_add_u32 v9, v9, v10
    s_lshl_b32 s64, s62, 6
    v_add_u32 v9, s64, v9
    v_add_u32 v10, {WQ}, v9
    """)
    gemm_frags_A(a, WQ, 10, 56)
    a(f"""
    s_lshl_b32 s65, s63, 4                        ; 16*nt
    v_add_u32 v11, s65, v7
    v_mul_u32_u24 v112, {RS}, v11
    v_lshlrev_b32 v113, 4, v8                     ; g*16
    v_add_u32 v113, v112, v113
    """)
    for c in range(4):
        a(f"ds_read_b128 {vr(88+4*c,4)}, v113 offset:{XO + 64*c}")
    a("s_waitcnt lgkmcnt(0)")
    for c in range(4):
        for h in range(2):
            d = 104 + 4 * h
            a(f"v_mfma_f32_16x16x32_bf16 {vr(d,4)}, {vr(56+(h*4+c)*4,4)}, {vr(88+4*c,4)}, {'0' if c==0 else vr(d,4)}")
    a(f"""
    s_nop 7
    s_nop 1
    v_cvt_pk_bf16_f32 v112, v104, v105
    v_cvt_pk_bf16_f32 v113, v106, v107
    v_cvt_pk_bf16_f32 v114, v108, v109
    v_cvt_pk_bf16_f32 v115, v110, v111
    v_mul_u32_u24 v116, {RS}, v11
    v_lshlrev_b32 v117, 4, v8
    v_add_u32 v116, v116, v117
    v_add_u32 v116, s64, v116                     ; + 32cbp*2
    v_cmp_gt_u32 vcc, {NPB}, v11
    s_and_saveexec_b64 s[60:61], vcc
    ds_write_b128 v116, v[112:115] offset:{QT}
    s_mov_b64 exec, s[60:61]
L_qdone:
    """)
    a(f"""
    s_mul_i32 s62, s2, {NPB}
    v_mov_b32 v7, v0
    v_mov_b32 v8, 1
    s_mov_b32 s63, 0
L_scan:
    v_cmp_gt_u32 vcc, 80000, v7
    s_and_saveexec_b64 s[60:61], vcc
    s_cbranch_execz L_scan_next
    v_lshlrev_b32 v9, 4, v7
    buffer_load_dwordx4 v[56:59], v9, s[{sDST}:{sDST+3}], 0 offen
    buffer_load_dwordx4 v[60:63], v9, s[{sSRC}:{sSRC+3}], 0 offen
    s_mov_b64 s[66:67], exec
    s_waitcnt vmcnt(0)
    """)
    for k in range(4):
        a(f"v_subrev_u32 v{64+k}, s62, v{56+k}")
        a(f"v_cmp_gt_u32 s[{68+2*k}:{69+2*k}], {NPB}, v{64+k}")
        a(f"v_lshlrev_b32 v{68+k}, 2, v{64+k}")
    for k in range(4):
        a(f"s_and_b64 exec, s[66:67], s[{68+2*k}:{69+2*k}]")
        a(f"ds_add_rtn_u32 v{72+k}, v{68+k}, v8 offset:{CNT}")
    a("s_mov_b64 exec, s[66:67]")
    a("s_waitcnt lgkmcnt(0)")
    for k in range(4):
        a(f"v_lshlrev_b32 v{64+k}, 8, v{64+k}")
        a(f"v_lshl_add_u32 v{64+k}, v{72+k}, 2, v{64+k}")
        a(f"v_lshlrev_b32 v{60+k}, 8, v{60+k}")
        a(f"v_cmp_gt_u32 vcc, {CAPN}, v{72+k}")
        a(f"s_and_b64 s[{68+2*k}:{69+2*k}], s[{68+2*k}:{69+2*k}], vcc")
    for k in range(4):
        a(f"s_and_b64 exec, s[66:67], s[{68+2*k}:{69+2*k}]")
        a(f"ds_write_b32 v{64+k}, v{60+k} offset:{NL}")
    a(f"""
L_scan_next:
    s_mov_b64 exec, s[60:61]
    v_add_u32 v7, 1024, v7
    s_add_u32 s63, s63, 1
    s_cmp_lt_u32 s63, 79
    s_cbranch_scc1 L_scan
    s_waitcnt lgkmcnt(0)
    s_barrier
    """)
    a(f"""
    """)
    for i in range(16):
        a(f"v_mov_b32 v{vACC+i}, 0")
    a(f"""
    s_cmp_ge_u32 s{sW}, {5*NSPLIT}
    s_cbranch_scc1 L_main_done
    ; b = w % 5, s = w / 5
    s_mul_i32 s62, s{sW}, 52
    s_lshr_b32 s{sS}, s62, 8                      ; w/5 for w<16
    s_mul_i32 s62, s{sS}, 5
    s_sub_u32 s{sB}, s{sW}, s62
    v_lshrrev_b32 v7, 3, v{vLane}                 ; eps
    v_and_b32 v8, 7, v{vLane}
    v_lshlrev_b32 v{vRho16}, 4, v8
    s_lshl_b32 s62, s{sB}, 3
    v_add_u32 v7, s62, v7
    v_lshlrev_b32 v8, 2, v7
    ds_read_b32 v{vCnt}, v8 offset:{CNT}
    v_mul_u32_u24 v9, {RS}, v7
    v_add_u32 v9, v9, v{vRho16}
    ds_read_b128 {vr(vQ,4)}, v9 offset:{QT}
    ds_read_b128 {vr(vQ+4,4)}, v9 offset:{QT+128}
    v_lshlrev_b32 v{vNL}, 8, v7
    s_lshl_b32 s62, s{sS}, 4
    v_add_u32 v{vNL}, s62, v{vNL}
    ds_read_b128 {vr(vE,4)}, v{vNL} offset:{NL}
    v_add_u32 v{vNL}, {NSPLIT*16}, v{vNL}
    v_and_b32 v8, 3, v{vLane}
    v_mov_b32 v{vM0}, 0
    v_mov_b32 v{vM1}, 0
    v_mov_b32 v10, 0xffff
    v_mov_b32 v11, 0xffff0000
    v_cmp_eq_u32 vcc, 0, v8
    s_nop 1
    v_cndmask_b32 v{vM0}, v{vM0}, v10, vcc
    v_cmp_eq_u32 vcc, 1, v8
    s_nop 1
    v_cndmask_b32 v{vM0}, v{vM0}, v11, vcc
    v_cmp_eq_u32 vcc, 2, v8
    s_nop 1
    v_cndmask_b32 v{vM1}, v{vM1}, v10, vcc
    v_cmp_eq_u32 vcc, 3, v8
    s_nop 1
    v_cndmask_b32 v{vM1}, v{vM1}, v11, vcc
    s_waitcnt lgkmcnt(1)
    v_min_u32 v{vCnt}, {CAPN}, v{vCnt}
    s_nop 0
    """)
    a(f"v_readlane_b32 s62, v{vCnt}, 0")
    for e in range(1, 8):
        a(f"v_readlane_b32 s63, v{vCnt}, {8*e}")
        a("s_nop 0")
        a("s_max_u32 s62, s62, s63")
    a(f"""
    s_add_u32 s62, s62, 3
    s_lshr_b32 s62, s62, 2
    s_add_u32 s62, s62, {NSPLIT-1}
    s_sub_u32 s62, s62, s{sS}                     ; nch + 2 - s  (>= 0)
    s_mul_i32 s62, s62, 171
    s_lshr_b32 s{sN}, s62, 9                      ; /3
    s_cmp_eq_u32 s{sN}, 0
    s_cbranch_scc1 L_main_done
    s_mov_b32 s{sI}, 1
    """)
    issue_tile(a, vXA)
    a.label("L_loop")
    for cur, nxt in ((vXA, vXB), (vXB, vXA)):
        l_last = a.newlabel("L_last"); l_go = a.newlabel("L_go")
        a(f"s_cmp_ge_u32 s{sI}, s{sN}\ns_cbranch_scc1 {l_last}")
        issue_tile(a, nxt)
        a(f"s_waitcnt vmcnt(8)\ns_branch {l_go}")
        a.label(l_last)
        a("s_waitcnt vmcnt(0)")
        a.label(l_go)
        compute_tile(a, cur)
        a(f"s_add_u32 s{sI}, s{sI}, 1")
        a(f"s_cmp_gt_u32 s{sI}, s{sN}")
        if cur == vXA:
            a("s_cbranch_scc1 L_main_done")
        else:
            a("s_cbranch_scc0 L_loop")
    a(f"""
L_main_done:
    s_waitcnt lgkmcnt(0)
    s_cmp_ge_u32 s{sW}, {5*NSPLIT}
    s_cbranch_scc1 L_part_done
    s_nop 7
    """)
    for hf in range(2):
        for q in range(2):
            for mm in range(2):
                s_ = vACC + 4 * (2 * hf + q) + 2 * mm
                a(f"v_cvt_pk_bf16_f32 v{56 + 4*hf + 2*q + mm}, v{s_}, v{s_+1}")
    a(f"""
    v_lshrrev_b32 v7, 3, v{vLane}
    s_lshl_b32 s62, s{sB}, 3
    v_add_u32 v7, s62, v7
    v_mul_u32_u24 v9, {RS}, v7
    v_add_u32 v9, v9, v{vRho16}
    s_mul_i32 s62, s{sS}, {PSTRIDE}
    v_add_u32 v9, s62, v9
    ds_write_b128 v9, v[56:59] offset:{PART}
    ds_write_b128 v9, v[60:63] offset:{PART+128}
L_part_done:
    s_waitcnt lgkmcnt(0)
    s_barrier
    s_cmp_ge_u32 s{sW}, 12
    s_cbranch_scc1 L_end
    s_and_b32 s62, s{sW}, 3                       ; cbp
    s_lshr_b32 s63, s{sW}, 2                      ; nt
    v_and_b32 v7, 15, v{vLane}
    v_lshrrev_b32 v8, 4, v{vLane}
    v_lshrrev_b32 v9, 2, v7
    v_lshl_add_u32 v9, v8, 3, v9
    v_mul_u32_u24 v9, {WS_}, v9
    v_and_b32 v10, 3, v7
    v_lshlrev_b32 v10, 4, v10
    v_add_u32 v9, v9, v10
    s_lshl_b32 s64, s62, 6
    v_add_u32 v9, s64, v9
    v_add_u32 v10, {WV}, v9
    """)
    gemm_frags_A(a, WV, 10, 56)
    a(f"""
    s_lshl_b32 s65, s63, 4
    v_add_u32 v11, s65, v7
    v_mul_u32_u24 v2, {RS}, v11
    v_lshlrev_b32 v3, 4, v8
    v_add_u32 v3, v2, v3
    """)
    Breg = [88, 104, 8 + 4]
    for s in range(NSPLIT):
        for c in range(4):
            a(f"ds_read_b128 {vr(Breg[s]+4*c,4)}, v3 offset:{PART + s*PSTRIDE + 64*c}")
    a("s_waitcnt lgkmcnt(0)")
    first = True
    for s in range(NSPLIT):
        for c in range(4):
            for h in range(2):
                d = 28 + 4 * h
                a(f"v_mfma_f32_16x16x32_bf16 {vr(d,4)}, {vr(56+(h*4+c)*4,4)}, {vr(Breg[s]+4*c,4)}, {'0' if (s==0 and c==0) else vr(d,4)}")
    a(f"""
    s_nop 7
    s_nop 1
    v_cvt_pk_bf16_f32 v36, v28, v29
    v_cvt_pk_bf16_f32 v37, v30, v31
    v_cvt_pk_bf16_f32 v38, v32, v33
    v_cvt_pk_bf16_f32 v39, v34, v35
    s_mul_i32 s66, s2, {NPB}
    v_add_u32 v4, s66, v11
    v_lshlrev_b32 v4, 8, v4
    v_lshlrev_b32 v5, 4, v8
    v_add_u32 v4, v4, v5
    v_add_u32 v4, s64, v4
    v_cmp_gt_u32 vcc, {NPB}, v11
    s_and_saveexec_b64 s[60:61], vcc
    buffer_store_dwordx4 v[36:39], v4, s[{sOUT}:{sOUT+3}], 0 offen
L_end:
    s_endpgm
    """)
    k = dict(name=NAME, grid=(NWG,1,1), block=(1024,1,1), lds=LDS_END, body=a.text(), vgpr=120, sgpr=80)
    return kernel_file([k], single=True)

if __name__ == "__main__":
    open(sys.argv[1] if len(sys.argv) > 1 else "v1.s", "w").write(gen())
```
